```python
import torch

def _softmax(x, axis=-1):
    return torch.softmax(x, dim=axis)
def _gelu(x):
    return torch.nn.functional.gelu(x, approximate="tanh")
def _silu(x):
    return torch.nn.functional.silu(x)
def _sigmoid(x):
    return torch.sigmoid(x)
def _layernorm(x, axis=-1, eps=1e-5):
    m = x.mean(dim=axis, keepdim=True)
    v = x.var(dim=axis, keepdim=True, unbiased=False)
    return (x - m) / torch.sqrt(v + eps)
def _scatter_add(tgt, idx, src, axis=0):
    return tgt.clone().index_add_(axis, idx, src)
def _segment_sum(src, seg, n):
    out = torch.zeros((n,) + src.shape[1:], dtype=src.dtype)
    return out.index_add_(0, seg, src)
def _pad(x, pw):
    flat = tuple(v for pair in reversed(pw) for v in pair)
    return torch.nn.functional.pad(x, flat)

kernel_name = 'gated_mix__mha_block_cached__dense_activation_mish__decode'

def setup_inputs():

    _w = (lambda a: (lambda t: t.to(torch.bfloat16) if t.is_floating_point() else t)(torch.as_tensor(a)))
    def _A_setup():
        B, Sq, D = 2, 1, 576
        H, Sk, Dh = 32, 8192, 128
        return {
            "x": _w((lambda *s: torch.randn(*s, dtype=torch.bfloat16) * 0.05)(B, Sq, D)),
            "k_cache": _w((lambda *s: torch.randn(*s, dtype=torch.bfloat16) * 6.4)(B, H, Sk, Dh)),
            "v_cache": _w((lambda *s: torch.randn(*s, dtype=torch.bfloat16) * 0.2)(B, H, Sk, Dh)),
            "wq": _w((lambda *s: torch.randn(*s, dtype=torch.bfloat16) * 6.4)(D, H * Dh) * (D ** -0.5)),
            "wo": _w((lambda *s: torch.randn(*s, dtype=torch.bfloat16) * 0.2)(H * Dh, D) * ((H * Dh) ** -0.5)),
        }
    _A_in = _A_setup()

    def _B_setup():
        B, S, D, F = 2, 1, 576, 4608
        return {
            "x": _w((lambda *s: torch.randn(*s, dtype=torch.bfloat16) * 0.05)(B, S, D)),
            "w1": _w((lambda *s: torch.randn(*s, dtype=torch.bfloat16) * 3.2)(D, F) * (D ** -0.5)),
            "b1": _w((lambda *s: torch.randn(*s, dtype=torch.bfloat16) * 0.05)(F)),
            "w2": _w((lambda *s: torch.randn(*s, dtype=torch.bfloat16) * 0.05)(F, D) * (F ** -0.5)),
        }
    _B_in = _B_setup()

    return {
        "A_x": _A_in["x"],
        "A_k_cache": _A_in["k_cache"],
        "A_v_cache": _A_in["v_cache"],
        "A_wq": _A_in["wq"],
        "A_wo": _A_in["wo"],
        "B_x": _B_in["x"],
        "B_w1": _B_in["w1"],
        "B_b1": _B_in["b1"],
        "B_w2": _B_in["w2"],
        "gate_w": _w((lambda *s: torch.randn(*s, dtype=torch.bfloat16) * 0.05)(576) * 16.0),
    }

def reference(A_x, A_k_cache, A_v_cache, A_wq, A_wo, B_x, B_w1, B_b1, B_w2, gate_w):
    def _A_ref(x, k_cache, v_cache, wq, wo):
        B, Sq, D = x.shape
        H, Dh = 32, 128
        q = (lambda x, *d: x.permute(*d))((x @ wq).reshape(B, Sq, H, Dh), 0, 2, 1, 3)
        scores = torch.einsum("bhqd,bhkd->bhqk", q, k_cache) * (Dh ** -0.5)
        p = _softmax(scores, axis=-1)
        o = torch.einsum("bhqk,bhkd->bhqd", p, v_cache)
        return (lambda x, *d: x.permute(*d))(o, 0, 2, 1, 3).reshape(B, Sq, H * Dh) @ wo

    def _B_ref(x, w1, b1, w2):
        h = torch.einsum("bsd,df->bsf", x, w1) + b1
        sp = torch.log1p(torch.exp(-torch.abs(h))) + torch.where(h > 0, h, torch.zeros_like(h))
        act = h * torch.tanh(sp)
        return torch.einsum("bsf,fd->bsd", act, w2)

    x = A_x
    g = _sigmoid((x * gate_w).sum(-1, keepdims=True))
    a = _A_ref(x, A_k_cache, A_v_cache, A_wq, A_wo)
    b = _B_ref(x, B_w1, B_b1, B_w2)
    return g * a + (1 - g) * b
```

```python
import re
TRANS=('v_exp_f32','v_log_f32','v_rcp_f32','v_rsq_f32','v_sqrt_f32','v_sin_f32','v_cos_f32')
def regs(tok):
    tok=tok.strip()
    tok=tok.replace('-','',1) if tok.startswith('-') and len(tok)>1 and tok[1] in 'vas|' else tok
    tok=tok.strip('|')
    if tok.startswith('abs('): tok=tok[4:-1]
    m=re.fullmatch(r'([vas])(\d+)',tok)
    if m: return {(m.group(1),int(m.group(2)))}
    m=re.fullmatch(r'([vas])\[(\d+):(\d+)\]',tok)
    if m: return {(m.group(1),i) for i in range(int(m.group(2)),int(m.group(3))+1)}
    if tok in('vcc','vcc_lo','vcc_hi'): return {('s','vcc')}
    if tok in('exec','exec_lo','exec_hi'): return {('s','exec')}
    if tok=='m0': return {('s','m0')}
    return set()
class Ins:
    def __init__(s,text):
        s.text=text
        t=text.split(';')[0].strip()
        s.label=t.endswith(':')
        s.dir=t.startswith('.') and not s.label
        s.R=set(); s.W=set(); s.op=''; s.C=set(); s.AB=set(); s.data=set()
        if s.label or s.dir or not t: s.kind='none'; return
        p=t.split(None,1); s.op=op=p[0]
        rest=p[1] if len(p)>1 else ''
        ops=[x.strip() for x in re.split(r',\s*(?![^\[]*\])',rest)] if rest else []
        if ops:
            last=ops[-1].split(); ops[-1]=last[0] if last else ''; s.mods=' '.join(last[1:])
        else: s.mods=''
        rs=[regs(o) for o in ops]
        if op.startswith('v_mfma'):
            s.kind='mfma'; s.W=rs[0]; s.AB=rs[1]|rs[2]; s.C=rs[3]; s.R=s.AB|s.C
        elif op.startswith('v_'):
            s.kind='valu'
            if op.startswith('v_nop'): return
            s.W=set(rs[0]);
            src=rs[1:]
            if op.startswith(('v_add_co','v_sub_co','v_addc_co','v_subb_co')): s.W|=rs[1]; src=rs[2:]
            for r in src: s.R|=r
            if op.startswith('v_permlane'): s.W|=rs[1]; s.R|=rs[0]
            if op.startswith(('v_fmac','v_dot2c','v_writelane')): s.R|=rs[0]
            if '_dpp' in op: s.R|=rs[0]
            if op.startswith('v_dot2_'): s.C=rs[3]; s.AB=rs[1]|rs[2]
            if op.startswith('v_dot2c'): s.C=rs[0]; s.AB=rs[1]|rs[2]
        elif op.startswith('buffer_'):
            s.kind='vmem'
            if ' lds' in (' '+s.mods):
                for r in rs: s.R|=r
                s.R|={('s','m0')}
            elif op.startswith('buffer_load'):
                s.W=rs[0]
                for r in rs[1:]: s.R|=r
                if 'd16' in op: s.R|=rs[0]
            else:
                for r in rs: s.R|=r
                s.data=rs[0]
                if 'atomic' in op and 'sc0' in s.mods: s.W=rs[0]
        elif op.startswith('ds_'):
            s.kind='ds'
            if op.startswith('ds_read') or op.startswith('ds_bpermute') or '_rtn' in op:
                s.W=rs[0]
                for r in rs[1:]: s.R|=r
            else:
                for r in rs: s.R|=r
        else:
            s.kind='salu'
            if op.startswith(('s_cmp','s_bitcmp')):
                for r in rs: s.R|=r
            elif op.startswith(('s_cbranch','s_branch','s_waitcnt','s_nop','s_barrier','s_endpgm','s_sleep','s_setprio')): pass
            else:
                if rs: s.W=rs[0]
                for r in rs[1:]: s.R|=r
    def states(s):
        if s.kind=='none': return 0
        if s.op=='s_nop': return int(s.text.split(';')[0].split()[1],0)+1
        return 1
def need(p,c):
    n=0
    vW={r for r in p.W if r[0] in 'va'}; sW={r for r in p.W if r[0]=='s'}
    if p.kind=='valu':
        if vW&c.R:
            if c.kind=='valu' and '_dpp' in c.op: n=max(n,2)
            if c.kind=='mfma': n=max(n,2)
            if c.op.startswith('v_permlane'): n=max(n,2)
            if c.op.startswith(('v_readlane','v_readfirstlane')): n=max(n,1)
            if p.op.startswith(TRANS): n=max(n,1)
        if p.op.startswith('v_dot'):
            if vW&(c.R|c.W):
                if c.op==p.op and not (vW&c.AB): pass
                else: n=max(n,3)
        if sW&c.R:
            if c.kind=='valu': n=max(n,4 if c.op.startswith(('v_readlane','v_writelane')) else 2)
            if c.kind=='vmem': n=max(n,5)
            if c.kind=='salu': n=max(n,1)
    if p.kind=='mfma':
        if c.kind=='mfma':
            if vW&c.AB: n=max(n,8)
            if vW&c.C and c.C!=p.W: n=max(n,6)
            if vW&c.W and not (vW&c.C): n=max(n,8)
        elif vW&(c.R|c.W): n=max(n,8)
        if c.kind=='valu' and p.C&c.W: n=max(n,3)
    if p.kind=='vmem' and p.data and len(p.data)>=3 and p.data&c.W: n=max(n,2)
    if p.kind=='salu' and ('s','m0') in p.W and ('s','m0') in c.R and c.kind=='vmem': n=max(n,1)
    return n
def pad(lines):
    out=[]; hist=[]; added=0
    for t in lines:
        c=Ins(t)
        if c.kind!='none':
            d=0; req=0
            for p in reversed(hist):
                req=max(req,need(p,c)-d)
                d+=p.states()
                if d>=12: break
            if req>0:
                nop=Ins('s_nop %d'%(req-1)); out.append(nop.text); hist.append(nop); added+=req
            hist.append(c)
        out.append(t)
    return out,added
```

```python
import sys, math
from asmlib import pad
NAME='gated_mix__mha_block_cached__dense_activation_mish__decode'
KN=NAME+'_kernel'
HEADER=open('cdna_kernels/%s.s.ref'%NAME).read().split('; Override launch')[0] if False else None

LOG2E=1.4426950408889634
import struct
def fbits(x): return '0x%08x'%struct.unpack('<I',struct.pack('<f',x))[0]

def mix(nk, extras):
    out=[]; ne=len(extras); e=0
    for i in range(nk):
        while e<ne and e*nk<=i*ne: out.append(extras[e]); e+=1
        out.append('k')
    out+=list(extras[e:])
    return out

def gen(F=8, NA=72, stamp=False, FV=None, FE=None, NE=0):
    if FV is None: FV=F
    if FE is None: FE=FV
    o=[]; A=o.append
    vK,vQ,vW1,vWO,vW2a,vW2b,vZ,vST,vSTr,vLq,vG,vM,vF,t0,t1=range(1,16)
    M8=16; X8=20; b1a,b1b,t2=29,30,31; S=32; x0=40; y0=44; z0=46; u,w_=50,51; Q=52; O=56; A0=60; T=68; Y=84; A2=120
    QL,QR,H=84,88,92
    sK,sV,sWQ,sWO,sW1,sW2,sX,sGT,sB1,sWS,sOUT,sDBG=[32+4*i for i in range(12)]
    sKo,sWo=80,81; mB1,mB0=82,84; sH,sB,sS,sJ,sC,sT,sT2,sCnt,sLo,sHi=86,87,88,89,90,91,92,93,94,95
    def srd(n): return 's[%d:%d]'%(n,n+3)
    def vr(n,c=4): return 'v[%d:%d]'%(n,n+c-1)
    STAT=0x90000; OOB=0x40000000
    LQH=0; LO=12288; LY=14336; LDS=LY+16*2304
    st={'n':0,'done':-1,'F':F}
    def wait_for(idx):
        if idx>st['done']:
            c=st['n']-1-idx
            assert c<64
            A('s_waitcnt vmcnt(%d)'%c); st['done']=idx
    def issue(text,throttle=True):
        if throttle and st['n']>=st['F']: wait_for(st['n']-st['F'])
        A(text); st['n']+=1; return st['n']-1
    vfree=[('v',128+4*i) for i in range(32)]
    afree=[('a',4*i) for i in range(64)]
    def sl(s): return '%s[%d:%d]'%(s[0],s[1],s[1]+3)
    def free(s): (vfree if s[0]=='v' else afree).append(s)

    A('s_cmp_ge_u32 s2, 256'); A('s_cbranch_scc1 L_end')
    A('s_load_dwordx16 s[4:19], s[0:1], 0')
    A('s_load_dwordx8 s[20:27], s[0:1], 64')
    A('s_load_dwordx2 s[28:29], s[0:1], 96')
    if stamp: A('s_memrealtime s[96:97]')
    A('v_lshrrev_b32 v%d, 6, v0'%t0)
    A('v_and_b32 v0, 63, v0')
    A('v_readfirstlane_b32 s3, v%d'%t0)
    A('s_and_b32 s%d, s2, 31'%sH); A('s_lshr_b32 s%d, s2, 7'%sB); A('s_bfe_u32 s%d, s2, 0x20005'%sS)
    A('s_lshl_b32 s%d, s%d, 5'%(sT,sB)); A('s_add_u32 s%d, s%d, s%d'%(sT,sT,sH)); A('s_lshl_b32 s%d, s%d, 2'%(sT,sT)); A('s_add_u32 s30, s%d, s%d'%(sT,sS))
    A('s_lshl_b32 s31, s30, 19')
    A('s_lshl_b32 s%d, s3, 12'%sT)
    A('v_lshl_add_u32 v%d, v0, 4, s%d'%(vK,sT))
    A('v_lshrrev_b32 v%d, 3, v0'%t0)
    A('v_and_b32 v%d, 7, v0'%t1)
    A('s_mul_i32 s%d, s3, 144'%sT)
    A('v_mad_u32_u24 v%d, v%d, 18, s%d'%(t2,t0,sT))
    A('s_mul_i32 s%d, s%d, 1152'%(sT,sB))
    A('v_lshl_add_u32 v%d, v%d, 1, s%d'%(vG,t2,sT))
    A('s_lshl_b32 s%d, s%d, 8'%(sT,sH))
    A('v_lshl_add_u32 v%d, v%d, 4, s%d'%(vQ,t1,sT))
    A('v_lshl_add_u32 v%d, v%d, 13, v%d'%(vQ,t2,vQ))
    A('s_and_b32 s%d, s%d, 7'%(sJ,sH)); A('s_lshl_b32 s%d, s%d, 4'%(sJ,sJ)); A('s_lshr_b32 s%d, s%d, 3'%(sT,sH)); A('s_lshl_b32 s%d, s%d, 2'%(sT,sT))
    A('s_add_u32 s%d, s%d, s%d'%(sJ,sJ,sT)); A('s_add_u32 s%d, s%d, s%d'%(sJ,sJ,sS))
    A('s_mul_i32 s%d, s%d, 72'%(sT,sJ))
    A('v_lshl_add_u32 v%d, v%d, 4, s%d'%(vW1,t1,sT))
    A('s_movk_i32 s%d, 9216'%sT2)
    A('v_mad_u32_u24 v%d, v%d, s%d, v%d'%(vW1,t2,sT2,vW1))
    A('v_mov_b32 v%d, 0x%x'%(vF,OOB))
    A('v_cmp_gt_u32 vcc, 5, v%d'%t1)
    A('v_cndmask_b32 v%d, v%d, v%d, vcc'%(vW1,vF,vW1))
    for n,size in ((sK,524288),(sV,524288),(sWQ,576*8192),(sWO,4096*1152),(sW1,576*9216),(sW2,4608*1152),(sX,2304),(sGT,1152),(sB1,9216),(sWS,0x92000),(sOUT,2304),(sDBG,256)):
        A('s_mov_b32 s%d, %d'%(n+2,size)); A('s_mov_b32 s%d, 0x20000'%(n+3))
    A('s_waitcnt lgkmcnt(0)')
    A('s_add_u32 s%d, s6, s31'%sK); A('s_addc_u32 s%d, s7, 0'%(sK+1))
    A('s_mov_b64 s[%d:%d], s[4:5]'%(sX,sX+1))
    A('s_mov_b64 s[%d:%d], s[10:11]'%(sWQ,sWQ+1))
    A('s_mov_b64 s[%d:%d], s[16:17]'%(sW1,sW1+1))

    kidx={}
    vidx={}
    cnt={'k':0,'q':0,'1':0,'2':0,'o':0}
    wo_slot={}
    pend=[]
    cur={'ko':None,'wo':None}
    def set_so(which,reg,val):
        if cur[which]!=val:
            A(('s_movk_i32 s%d, %d' if val<32768 else 's_mov_b32 s%d, %d')%(reg,val)); cur[which]=val
    def ld_stream():
        i=cnt['k']; cnt['k']+=1
        isv=i>=128; ii=i%128
        if not isv: s=afree.pop(0) if (i<64) else (vfree.pop(0) if len(vfree)>0 else afree.pop(0))
        else: s=vfree.pop(0) if vfree else afree.pop(0)
        set_so('ko',sKo,(ii//4)*16384)
        n=issue('buffer_load_dwordx4 %s, v%d, %s, s%d offen offset:%d nt'%(sl(s),vK,srd(sV if isv else sK),sKo,(ii%4)*1024))
        (vidx if isv else kidx)[ii]=(n,s)
    Aalt=[0]
    curA={'R':None,'reg':None}
    def prepA_x(R):
        if curA['R']==R: return curA['reg']
        a=A0+4*Aalt[0]; Aalt[0]^=1
        A('v_perm_b32 v%d, v%d, v%d, s%d'%(t0,X8+R//2,X8+R//2,sHi if R%2 else sLo))
        for k in range(4): A('v_and_b32 v%d, v%d, v%d'%(a+k,t0,M8+k))
        curA['R']=R; curA['reg']=a
        return a
    def ld_q():
        i=cnt['q']; cnt['q']+=1; R=i//2; half=i%2
        s=vfree.pop(0)
        set_so('wo',sWo,R*8192)
        n=issue('buffer_load_dwordx4 %s, v%d, %s, s%d offen offset:%d nt'%(sl(s),vQ,srd(sWQ),sWo,half*128))
        def fn():
            a=prepA_x(R); acc=QR if half else QL
            A('v_mfma_f32_16x16x32_bf16 %s, %s, %s, %s'%(vr(acc),vr(a),sl(s),'0' if R==0 else vr(acc)))
            free(s)
        pend.append((n,fn))
    def ld_1():
        R=cnt['1']; cnt['1']+=1
        s=vfree.pop(0)
        set_so('wo',sWo,R*9216)
        n=issue('buffer_load_dwordx4 %s, v%d, %s, s%d offen nt'%(sl(s),vW1,srd(sW1),sWo))
        def fn():
            a=prepA_x(R)
            A('v_mfma_f32_16x16x32_bf16 %s, %s, %s, %s'%(vr(H),vr(a),sl(s),'0' if R==0 else vr(H)))
            free(s)
        pend.append((n,fn))
    def ld_2():
        i=cnt['2']; cnt['2']+=1; sset=i//9; G=i%9
        s=afree.pop(0) if afree else vfree.pop(0)
        n=issue('buffer_load_dwordx4 %s, v%d, %s, 0 offen offset:%d nt'%(sl(s),vW2b if sset else vW2a,srd(sW2),G*128))
        def fn():
            A('v_mfma_f32_16x16x32_bf16 %s, %s, %s, %s'%(vr(Y+4*G),vr(A2+4*sset),sl(s),'0' if sset==0 else vr(Y+4*G)))
            free(s)
        pend.append((n,fn))
    def ld_o():
        i=cnt['o']; cnt['o']+=1; R=i//9; G=i%9
        s=afree.pop(0)
        set_so('wo',sWo,R*1152)
        n=issue('buffer_load_dwordx4 %s, v%d, %s, s%d offen offset:%d nt'%(sl(s),vWO,srd(sWO),sWo,G*128))
        wo_slot[(R,G)]=(n,s)
    LD={'k':ld_stream,'q':ld_q,'1':ld_1,'2':ld_2,'o':ld_o}
    def run_pend():
        while pend and pend[0][0]<=st['done']:
            pend.pop(0)[1]()

    ix=issue('buffer_load_dwordx4 %s, v%d, %s, 0 offen'%(vr(X8),vG,srd(sX)))
    issue('buffer_load_dwordx4 %s, v%d, %s, 0 offen offset:16'%(vr(X8+4),vG,srd(sX)))
    issue('buffer_load_dword v%d, v%d, %s, 0 offen offset:32'%(X8+8,vG,srd(sX)))
    seqA=mix(NA,list('qq1'*18))
    st['F']=F+3
    pos=0
    while st['n']<F+3:
        LD[seqA[pos]](); pos+=1
    A('s_add_u32 s%d, s8, s31'%sV); A('s_addc_u32 s%d, s9, 0'%(sV+1))
    for n,p in ((sWO,12),(sW2,20),(sGT,22),(sB1,18),(sWS,28),(sOUT,24),(sDBG,26)):
        A('s_mov_b64 s[%d:%d], s[%d:%d]'%(n,n+1,p,p+1))
    A('s_mov_b32 s%d, 0xcccccccc'%mB1); A('s_mov_b32 s%d, 0xcccccccc'%(mB1+1))
    A('s_mov_b32 s%d, 0xaaaaaaaa'%mB0); A('s_mov_b32 s%d, 0xaaaaaaaa'%(mB0+1))
    A('s_mov_b32 s%d, 0x01000100'%sLo); A('s_mov_b32 s%d, 0x03020302'%sHi)
    A('s_mov_b32 s%d, %s'%(sC,fbits(LOG2E/math.sqrt(128.0))))
    A('v_and_b32 v%d, 1, v0'%t2); A('v_lshlrev_b32 v%d, 4, v%d'%(t2,t2)); A('v_mov_b32 v%d, 0xffff'%u); A('v_lshlrev_b32 v%d, v%d, v%d'%(t2,t2,u))
    A('v_lshrrev_b32 v%d, 1, v%d'%(u,t1))
    for k in range(4):
        A('v_cmp_eq_u32 vcc, %d, v%d'%(k,u)); A('v_cndmask_b32 v%d, 0, v%d, vcc'%(M8+k,t2))
    A('s_lshl_b32 s%d, s%d, 2'%(sT,sH)); A('s_add_u32 s%d, s%d, s3'%(sT,sT)); A('s_mul_i32 s%d, s%d, %d'%(sT,sT,32*1152))
    A('v_lshl_add_u32 v%d, v%d, 4, s%d'%(vWO,t1,sT))
    A('s_movk_i32 s%d, %d'%(sT2,4*1152))
    A('v_mad_u32_u24 v%d, v%d, s%d, v%d'%(vWO,t0,sT2,vWO))
    A('s_lshl_b32 s%d, s%d, 2'%(sT,sJ)); A('s_add_u32 s%d, s%d, s3'%(sT,sT)); A('s_mul_i32 s%d, s%d, 9'%(sCnt,sT))
    A('s_mul_i32 s%d, s%d, 1152'%(sT,sCnt))
    A('v_lshl_add_u32 v%d, v%d, 4, s%d'%(vW2a,t1,sT))
    A('v_add_u32 v%d, %d, v%d'%(vW2b,8*1152,vW2a))
    A('s_movk_i32 s%d, 1152'%sT2)
    A('v_mad_u32_u24 v%d, v%d, s%d, v%d'%(vW2a,t0,sT2,vW2a))
    A('v_cmp_gt_u32 vcc, 8, v0'); A('v_cndmask_b32 v%d, v%d, v%d, vcc'%(vW2b,vF,vW2b))
    A('v_add_lshl_u32 v%d, v%d, s%d, 1'%(b1a,t0,sCnt))
    A('s_add_u32 s%d, s%d, 8'%(sT,sCnt)); A('s_lshl_b32 s%d, s%d, 1'%(sT,sT)); A('v_mov_b32 v%d, s%d'%(b1b,sT))
    A('s_mul_i32 s%d, s30, 2304'%sT); A('s_mul_i32 s%d, s3, 576'%sT2); A('s_add_u32 s%d, s%d, s%d'%(sT,sT,sT2))
    A('v_lshl_add_u32 v%d, v0, 4, s%d'%(vZ,sT))
    A('v_cmp_gt_u32 vcc, 36, v0'); A('v_cndmask_b32 v%d, v%d, v%d, vcc'%(vZ,vF,vZ))
    A('v_lshlrev_b32 v%d, 5, v0'%y0); A('v_cndmask_b32 v%d, v%d, v%d, vcc'%(y0,vF,y0))
    A('s_mul_i32 s%d, s%d, 1152'%(sT,sB)); A('v_add_u32 v%d, s%d, v%d'%(y0+1,sT,y0))
    A('s_lshl_b32 s%d, s30, 2'%sT); A('s_add_u32 s%d, s%d, s3'%(sT,sT)); A('s_lshl_b32 s%d, s%d, 3'%(sT,sT)); A('s_add_u32 s%d, s%d, 0x%x'%(sT,sT,STAT))
    A('v_mov_b32 v%d, s%d'%(vST,sT)); A('v_cmp_eq_u32 vcc, 0, v0'); A('v_cndmask_b32 v%d, v%d, v%d, vcc'%(vST,vF,vST))
    A('s_and_b32 s%d, s%d, 0xffffff80'%(sT,sT))
    A('v_and_b32 v%d, 15, v0'%u); A('v_lshl_add_u32 v%d, v%d, 3, s%d'%(vSTr,u,sT))
    A('v_lshrrev_b32 v%d, 5, v0'%u); A('v_and_b32 v%d, 1, v%d'%(w_,t0)); A('v_xor_b32 v%d, v%d, v%d'%(w_,w_,u))
    A('v_lshl_add_u32 v%d, v%d, 3, v%d'%(u,w_,u)); A('s_lshl_b32 s%d, s3, 1'%sT); A('v_add_u32 v%d, s%d, v%d'%(vLq,sT,u))
    A('v_bfe_u32 v%d, v0, 4, 1'%u); A('v_lshlrev_b32 v%d, 4, v%d'%(u,u)); A('v_lshl_add_u32 v%d, v%d, 5, v%d'%(vM,t1,u))
    A('s_movk_i32 s%d, 768'%sT); A('v_mad_u32_u24 v%d, v%d, s%d, v%d'%(A2,vLq,sT,vM))
    A('s_movk_i32 s%d, 2304'%sT); A('v_mad_u32_u24 v%d, v%d, s%d, v%d'%(vLq,vLq,sT,vM))
    for k in range(4): A('v_mov_b32 v%d, -1'%(z0+k))
    st['F']=F
    small=[
      lambda: issue('buffer_store_dwordx4 %s, v%d, %s, 0 offen sc1'%(vr(z0),vZ,srd(sWS)),False),
      lambda: issue('buffer_store_dwordx2 %s, v%d, %s, 0 offen sc1'%(vr(z0,2),vST,srd(sWS)),False),
      lambda: issue('buffer_load_dwordx4 %s, v%d, %s, 0 offen'%(vr(T),y0,srd(sGT)),False),
      lambda: issue('buffer_load_dwordx4 %s, v%d, %s, 0 offen offset:16'%(vr(T+4),y0,srd(sGT)),False),
      lambda: issue('buffer_load_dwordx4 %s, v%d, %s, 0 offen'%(vr(T+8),y0+1,srd(sX)),False),
      lambda: issue('buffer_load_dwordx4 %s, v%d, %s, 0 offen offset:16'%(vr(T+12),y0+1,srd(sX)),False),
      lambda: issue('buffer_load_ushort v%d, v%d, %s, 0 offen'%(b1a,b1a,srd(sB1)),False),
      lambda: issue('buffer_load_ushort v%d, v%d, %s, 0 offen'%(b1b,b1b,srd(sB1)),False),
    ]
    def wave_allreduce(op,r,tmp):
        for sh in (8,4,2,1): A('%s_dpp v%d, v%d, v%d row_ror:%d row_mask:0xf bank_mask:0xf'%(op,r,r,r,sh))
        for sw in ('16','32'):
            A('v_mov_b32 v%d, v%d'%(tmp,r)); A('v_permlane%s_swap_b32 v%d, v%d'%(sw,r,tmp)); A('%s v%d, v%d, v%d'%(op,r,r,tmp))
    def g_task():
        A('v_dot2_f32_bf16 v%d, v%d, v%d, 0'%(vG,T,T+8))
        for k in range(1,8): A('v_dot2_f32_bf16 v%d, v%d, v%d, v%d'%(vG,T+k,T+8+k,vG))
        wave_allreduce('v_add_f32',vG,u)
        A('v_mul_f32 v%d, %s, v%d'%(vG,fbits(-LOG2E),vG)); A('v_exp_f32 v%d, v%d'%(vG,vG)); A('v_add_f32 v%d, 1.0, v%d'%(vG,vG)); A('v_rcp_f32 v%d, v%d'%(vG,vG))
    k=0
    while pos<len(seqA):
        LD[seqA[pos]](); pos+=1
        if small and k%2==1:
            n=small.pop(0)()
            if not small: pend.append((n,g_task))
        k+=1
        run_pend()
    while pend:
        ld_stream(); run_pend()
    for acc,off in ((QL,0),(QR,256),(H,512)): A('ds_write_b128 v%d, %s offset:%d'%(A2,vr(acc),LQH+off))
    A('v_and_b32 v%d, 15, v0'%t1); A('v_lshlrev_b32 v%d, 5, v%d'%(t1,t1))
    A('v_lshrrev_b32 v%d, 3, v0'%t0); A('s_mul_i32 s%d, s3, 9'%sT); A('v_add_lshl_u32 v%d, v%d, s%d, 2'%(t0,t0,sT))
    A('s_add_u32 s%d, s%d, 8'%(sT,sT)); A('s_lshl_b32 s%d, s%d, 2'%(sT,sT)); A('v_mov_b32 v%d, s%d'%(t2,sT))
    st['F']=F+2
    ld_stream(); ld_stream()
    A('s_waitcnt lgkmcnt(0)'); A('s_barrier')
    st['F']=F
    acc=96; tmp=[T,T+8,104,112]
    for hh in range(2): A('ds_read_b128 %s, v%d offset:%d'%(vr(acc+4*hh),t1,LQH+16*hh))
    for s_ in range(1,5):
        for hh in range(2): A('ds_read_b128 %s, v%d offset:%d'%(vr(tmp[s_-1]+4*hh),t1,LQH+768*s_+16*hh))
    A('v_mov_b32 v%d, 1'%u); A('v_or_b32 v%d, s3, v0'%w_); A('v_cmp_eq_u32 vcc, 0, v%d'%w_); A('v_cndmask_b32 v%d, v%d, v%d, vcc'%(w_,vF,w_))
    issue('buffer_atomic_add v%d, v%d, %s, 0 offen'%(u,w_,srd(sDBG)),False)
    A('s_waitcnt lgkmcnt(0)')
    for s_ in range(4):
        for p in range(4): A('v_pk_add_f32 %s, %s, %s'%(vr(acc+2*p,2),vr(acc+2*p,2),vr(tmp[s_]+2*p,2)))
    for s_ in range(5,8):
        for hh in range(2): A('ds_read_b128 %s, v%d offset:%d'%(vr(tmp[s_-5]+4*hh),t1,LQH+768*s_+16*hh))
    for s_ in range(8): A('ds_read_b32 v%d, v%d offset:%d'%(112+s_,t0,LQH+768*s_+512))
    A('s_waitcnt lgkmcnt(8)')
    for s_ in range(3):
        for p in range(4): A('v_pk_add_f32 %s, %s, %s'%(vr(acc+2*p,2),vr(acc+2*p,2),vr(tmp[s_]+2*p,2)))
    for k in range(4): A('v_cvt_pk_bf16_f32 v%d, v%d, v%d'%(Q+k,acc+2*k,acc+2*k+1))
    A('s_waitcnt lgkmcnt(0)')
    for s_ in range(8): A('ds_read_b32 v%d, v%d offset:%d'%(104+s_,t2,LQH+768*s_+512))
    if stamp: A('s_memrealtime s[98:99]')
    def mlp_task():
        A('s_waitcnt lgkmcnt(0)')
        A('v_sub_f32 v%d, 1.0, v%d'%(t2,vG))
        for si,(base,bb) in enumerate(((112,b1a),(104,b1b))):
            for p in (2,1):
                for q_ in range(p): A('v_pk_add_f32 %s, %s, %s'%(vr(base+2*q_,2),vr(base+2*q_,2),vr(base+2*q_+2*p,2)))
            hv=base; tt=base+2; uu=base+3; num=base+4; den=base+5; e=base+6
            A('v_add_f32 v%d, v%d, v%d'%(hv,base,base+1))
            A('v_lshlrev_b32 v%d, 16, v%d'%(bb,bb)); A('v_add_f32 v%d, v%d, v%d'%(hv,hv,bb))
            A('s_mov_b32 s%d, %s'%(sT,fbits(-LOG2E)))
            A('v_mul_f32 v%d, s%d, abs(v%d)'%(tt,sT,hv)); A('v_exp_f32 v%d, v%d'%(tt,tt))
            A('v_cmp_le_f32 vcc, 0, v%d'%hv)
            A('v_mul_f32 v%d, v%d, v%d'%(uu,tt,tt))
            A('v_cndmask_b32 v%d, v%d, 1.0, vcc'%(num,uu))
            A('v_cndmask_b32 v%d, 1.0, v%d, vcc'%(e,uu))
            A('v_fma_f32 v%d, 2.0, v%d, v%d'%(num,tt,num))
            A('v_fma_f32 v%d, 2.0, v%d, v%d'%(den,e,num))
            A('v_rcp_f32 v%d, v%d'%(den,den))
            A('v_mul_f32 v%d, v%d, v%d'%(num,num,hv))
            A('v_mul_f32 v%d, v%d, v%d'%(num,num,den))
            A('v_mul_f32 v%d, v%d, v%d'%(num,num,t2))
            A('v_cvt_pk_bf16_f32 v%d, v%d, v%d'%(num,num,num))
            for k in range(4): A('v_and_b32 v%d, v%d, v%d'%(A2+4*si+k,num,M8+k))
    def k_chunk(c):
        j=c&3
        src=[]
        for i in range(4):
            n,s=kidx[4*c+i]; wait_for(n)
            if s[0]=='a':
                for k in range(4): A('v_accvgpr_read_b32 v%d, a%d'%(T+4*i+k,s[1]+k))
                src.append(T+4*i)
            else: src.append(s[1])
        for k in range(4):
            for i in range(4): A('v_dot2_f32_bf16 v%d, v%d, v%d, %s'%(x0+i,src[i]+k,Q+k,'0' if k==0 else 'v%d'%(x0+i)))
        for i in range(4): free(kidx[4*c+i][1])
        for (d,sr,bm) in ((y0,x0,3),(y0+1,x0+1,3),(y0,x0+2,0xc),(y0+1,x0+3,0xc)):
            A('v_add_f32_dpp v%d, v%d, v%d row_ror:8 row_mask:0xf bank_mask:0x%x'%(d,sr,sr,bm))
        A('v_add_f32_dpp v%d, v%d, v%d row_half_mirror row_mask:0xf bank_mask:0x5'%(z0+j,y0,y0))
        A('v_add_f32_dpp v%d, v%d, v%d row_half_mirror row_mask:0xf bank_mask:0xa'%(z0+j,y0+1,y0+1))
        if j==3:
            m1='s[%d:%d]'%(mB1,mB1+1); m0='s[%d:%d]'%(mB0,mB0+1)
            A('v_cndmask_b32 v%d, v%d, v%d, %s'%(x0,z0,z0+2,m1)); A('v_cndmask_b32 v%d, v%d, v%d, %s'%(x0+1,z0+2,z0,m1))
            A('v_cndmask_b32 v%d, v%d, v%d, %s'%(x0+2,z0+1,z0+3,m1)); A('v_cndmask_b32 v%d, v%d, v%d, %s'%(x0+3,z0+3,z0+1,m1))
            A('v_add_f32_dpp v%d, v%d, v%d quad_perm:[2,3,0,1] row_mask:0xf bank_mask:0xf'%(y0,x0+1,x0))
            A('v_add_f32_dpp v%d, v%d, v%d quad_perm:[2,3,0,1] row_mask:0xf bank_mask:0xf'%(y0+1,x0+3,x0+2))
            A('v_cndmask_b32 v%d, v%d, v%d, %s'%(u,y0,y0+1,m0)); A('v_cndmask_b32 v%d, v%d, v%d, %s'%(w_,y0+1,y0,m0))
            A('v_add_f32_dpp v%d, v%d, v%d quad_perm:[1,0,3,2] row_mask:0xf bank_mask:0xf'%(S+(c>>2),w_,u))
    order=[]
    for g in (4,0,5,1,2,6,3,7): order+=[4*g+j for j in range(4)]
    def landed(c): return all((4*c+i) in kidx and kidx[4*c+i][0]<=st['done'] for i in range(4))
    left=128-cnt['k']
    seqB=['k']*6+mix(left-6,['2']*18)
    seqC=mix(116,['o']*36)+['k']*12
    seq=seqB+seqC
    pos=0
    k_chunk(order.pop(0))
    did_mlp=False
    while order:
        if pos<len(seq):
            LD[seq[pos]](); pos+=1
        if pos==2 and not did_mlp: mlp_task(); did_mlp=True
        run_pend()
        if landed(order[0]): k_chunk(order.pop(0))
    st['F']=FV
    A('v_max3_f32 v%d, v%d, v%d, v%d'%(vM,S,S+1,S+2)); A('v_max3_f32 v%d, v%d, v%d, v%d'%(vM,vM,S+3,S+4)); A('v_max3_f32 v%d, v%d, v%d, v%d'%(vM,vM,S+5,S+6)); A('v_max_f32 v%d, v%d, v%d'%(vM,vM,S+7))
    wave_allreduce('v_max_f32',vM,u)
    A('v_mul_f32 v%d, s%d, v%d'%(vM,sC,vM))
    LD[seq[pos]](); pos+=1; run_pend()
    for g in range(8): A('v_fma_f32 v%d, v%d, s%d, -v%d'%(S+g,S+g,sC,vM))
    for g in range(8): A('v_exp_f32 v%d, v%d'%(S+g,S+g))
    A('v_add_f32 v%d, v%d, v%d'%(y0+1,S,S+1))
    for g in range(2,8): A('v_add_f32 v%d, v%d, v%d'%(y0+1,y0+1,S+g))
    for g in range(8): A('v_cvt_pk_bf16_f32 v%d, v%d, v%d'%(S+g,S+g,S+g))
    LD[seq[pos]](); pos+=1; run_pend()
    wave_allreduce('v_add_f32',y0+1,u)
    A('v_min_u32 v%d, -2, v%d'%(y0,vM)); A('v_min_u32 v%d, -2, v%d'%(y0+1,y0+1))
    issue('buffer_store_dwordx2 %s, v%d, %s, 0 offen sc1'%(vr(y0,2),vST,srd(sWS)),False)
    vn=[0]; vA={}
    def prepA_v(i):
        if i>=128 or i in vA: return
        a=A0+4*(i&1); c=i>>2
        for k in range(4): A('v_and_b32_dpp v%d, v%d, v%d row_newbcast:%d row_mask:0xf bank_mask:0xf'%(a+k,S+(c>>2),M8+k,4*(i&3)+(c&3)))
        vA[i]=a
    def v_load():
        i=vn[0]; vn[0]+=1
        prepA_v(i)
        n,s=vidx[i]; wait_for(n)
        A('v_mfma_f32_16x16x32_bf16 %s, %s, %s, %s'%(vr(O),vr(vA[i]),sl(s),'0' if i==0 else vr(O)))
        free(s)
        prepA_v(i+1)
    lab=[0]
    def cnt_issue():
        A('v_mov_b32 v%d, 0'%t1)
        n=issue('buffer_load_dword v%d, v%d, %s, 0 offen sc1'%(t0,t1,srd(sDBG)),False)
        def fn():
            A('s_mov_b32 s%d, 0x40000'%sCnt)
            A('L_cnt:')
            A('v_readfirstlane_b32 s%d, v%d'%(sT,t0))
            A('s_nop 1')
            A('s_cmp_ge_u32 s%d, 256'%sT); A('s_cbranch_scc1 L_cnt_ok')
            A('s_sub_u32 s%d, s%d, 1'%(sCnt,sCnt)); A('s_cbranch_scc1 L_cnt_ok')
            A('s_sleep 2')
            A('buffer_load_dword v%d, v%d, %s, 0 offen sc1'%(t0,t1,srd(sDBG)))
            A('s_waitcnt vmcnt(0)'); A('s_branch L_cnt')
            A('L_cnt_ok:')
        pend.append((n,fn))
    def stat_issue():
        n=issue('buffer_load_dwordx2 %s, v%d, %s, 0 offen sc1'%(vr(x0,2),vSTr,srd(sWS)),False)
        def fn():
            A('s_mov_b32 s%d, 0x40000'%sCnt)
            A('L_st:')
            A('v_max_u32 v%d, v%d, v%d'%(u,x0,x0+1)); A('v_cmp_eq_u32 vcc, -1, v%d'%u)
            A('s_cbranch_vccz L_st_ok')
            A('s_sub_u32 s%d, s%d, 1'%(sCnt,sCnt)); A('s_cbranch_scc1 L_st_ok')
            A('s_sleep 2')
            A('buffer_load_dwordx2 %s, v%d, %s, 0 offen sc1'%(vr(x0,2),vSTr,srd(sWS)))
            A('s_waitcnt vmcnt(0)'); A('s_branch L_st')
            A('L_st_ok:')
            A('v_mov_b32 v%d, v%d'%(u,x0))
            for sh in (8,4,2,1): A('v_max_f32_dpp v%d, v%d, v%d row_ror:%d row_mask:0xf bank_mask:0xf'%(u,u,u,sh))
            A('v_sub_f32 v%d, v%d, v%d'%(x0,x0,u)); A('v_sub_f32 v%d, v%d, v%d'%(w_,vM,u))
            A('v_exp_f32 v%d, v%d'%(x0,x0)); A('v_exp_f32 v%d, v%d'%(w_,w_))
            A('v_mul_f32 v%d, v%d, v%d'%(x0,x0,x0+1))
            for sh in (8,4,2,1): A('v_add_f32_dpp v%d, v%d, v%d row_ror:%d row_mask:0xf bank_mask:0xf'%(x0,x0,x0,sh))
            A('v_rcp_f32 v%d, v%d'%(x0,x0))
            A('v_mul_f32 v%d, v%d, v%d'%(w_,w_,vG))
            A('v_mul_f32 v%d, v%d, v%d'%(vF,w_,x0))
            tail_setup()
        pend.append((n,fn))
    vLo,vLr,vLy,vPoll,vOut=vQ,vW1,vW2a,vW2b,b1a
    def tail_setup():
        A('v_and_b32 v%d, 15, v0'%t1); A('v_bfe_u32 v%d, v0, 4, 1'%t0); A('v_lshlrev_b32 v%d, 4, v%d'%(t0,t0)); A('v_lshl_add_u32 v%d, v%d, 5, v%d'%(t0,t1,t0))
        A('s_lshl_b32 s%d, s3, 9'%sT); A('v_add_u32 v%d, s%d, v%d'%(vLo,sT,t0))
        A('v_lshrrev_b32 v%d, 3, v0'%t0); A('s_lshl_b32 s%d, s3, 7'%sT); A('v_lshl_add_u32 v%d, v%d, 4, s%d'%(vLr,t0,sT))
        A('s_mul_i32 s%d, s3, 576'%sT); A('v_lshl_add_u32 v%d, v0, 4, s%d'%(vLy,sT))
        A('s_cmp_ge_u32 s2, 72'); A('s_cselect_b32 s%d, 1, 0'%sT); A('s_mul_i32 s%d, s%d, 72'%(sT2,sT)); A('s_sub_u32 s%d, s2, s%d'%(sT2,sT2))
        A('s_mul_i32 s%d, s%d, %d'%(sT,sT,128*2304)); A('s_lshl_b32 s%d, s%d, 5'%(sT2,sT2)); A('s_add_u32 s%d, s%d, s%d'%(sT,sT,sT2))
        A('v_and_b32 v%d, 1, v0'%t1); A('v_lshl_add_u32 v%d, v%d, 4, s%d'%(vPoll,t1,sT))
        A('v_lshrrev_b32 v%d, 1, v0'%t0); A('s_movk_i32 s%d, 2304'%sT2); A('v_mad_u32_u24 v%d, v%d, s%d, v%d'%(vPoll,t0,sT2,vPoll))
        A('v_lshrrev_b32 v%d, 4, v0'%t0); A('v_lshl_add_u32 v%d, v%d, 2, v%d'%(t0,t1,t0)); A('s_lshl_b32 s%d, s2, 4'%sT); A('v_lshl_add_u32 v%d, v%d, 1, s%d'%(vOut,t0,sT))
        A('v_and_b32 v%d, 14, v0'%t0); A('v_cmp_eq_u32 vcc, 0, v%d'%t0); A('v_mov_b32 v%d, 0x%x'%(t1,OOB)); A('v_cndmask_b32 v%d, v%d, v%d, vcc'%(vOut,t1,vOut))
        for i in range(1,4): A('s_mov_b32 s%d, %d'%(3+i,i*32*2304))
    did=set()
    while pos<len(seq):
        LD[seq[pos]](); pos+=1
        nv=cnt['k']-128
        if nv>=128-NE: st['F']=FE
        if nv>=32 and 'c' not in did: did.add('c'); cnt_issue()
        if nv>=96 and 's' not in did: did.add('s'); assert not pend; stat_issue()
        run_pend()
        b=0
        while b<2 and vn[0] in vidx and vidx[vn[0]][0]<=st['done']: v_load(); b+=1
    while vn[0]<128: v_load(); run_pend()
    assert not pend
    if stamp: A('s_memrealtime s[100:101]')
    A('v_pk_mul_f32 %s, %s, %s op_sel_hi:[1,0]'%(vr(O,2),vr(O,2),vr(vM,2)) if False else 'v_mul_f32 v%d, v%d, v%d'%(O,O,vF))
    for k in range(1,4): A('v_mul_f32 v%d, v%d, v%d'%(O+k,O+k,vF))
    A('ds_write_b128 v%d, %s offset:%d'%(vLo,vr(O),LO))
    A('s_waitcnt lgkmcnt(0)'); A('s_barrier')
    for s_ in range(4): A('ds_read_b128 %s, v%d offset:%d'%(vr(T+4*s_),vLr,LO+512*s_))
    A('s_waitcnt lgkmcnt(2)')
    for p in range(2): A('v_pk_add_f32 %s, %s, %s'%(vr(x0+2*p,2),vr(T+2*p,2),vr(T+4+2*p,2)))
    A('s_waitcnt lgkmcnt(0)')
    for p in range(2): A('v_pk_add_f32 %s, %s, %s'%(vr(T+8+2*p,2),vr(T+8+2*p,2),vr(T+12+2*p,2)))
    for p in range(2): A('v_pk_add_f32 %s, %s, %s'%(vr(x0+2*p,2),vr(x0+2*p,2),vr(T+8+2*p,2)))
    for R in range(4): A('v_cvt_pk_bf16_f32 v%d, v%d, v%d'%(x0+R,x0+R,x0+R))
    def andR(R):
        for k in range(4): A('v_and_b32 v%d, v%d, v%d'%(T+4*R+k,x0+R,M8+k))
    def mf(R,G): A('v_mfma_f32_16x16x32_bf16 %s, %s, %s, %s'%(vr(Y+4*G),vr(T+4*R),sl(wo_slot[(R,G)][1]),vr(Y+4*G)))
    def wr(G): A('ds_write_b128 v%d, %s offset:%d'%(vLq,vr(Y+4*G),LY+256*G))
    andR(0); andR(1); mf(0,0); mf(0,1); andR(2); mf(1,0); mf(1,1); andR(3); mf(2,0); mf(2,1); mf(3,0); mf(3,1)
    for G in range(2,9):
        for R in range(4): mf(R,G)
        if G>=3: wr(G-3)
    wr(6); wr(7); wr(8)
    A('s_waitcnt lgkmcnt(0)'); A('s_barrier')
    B=128
    for s_ in range(8): A('ds_read_b128 %s, v%d offset:%d'%(vr(B+4*s_),vLy,LY+2304*s_))
    for pr in range(4):
        A('s_waitcnt lgkmcnt(%d)'%(6-2*pr))
        for p in range(2): A('v_pk_add_f32 %s, %s, %s'%(vr(B+8*pr+2*p,2),vr(B+8*pr+2*p,2),vr(B+8*pr+4+2*p,2)))
        if pr==1 or pr==3:
            for p in range(2): A('v_pk_add_f32 %s, %s, %s'%(vr(B+8*(pr-1)+2*p,2),vr(B+8*(pr-1)+2*p,2),vr(B+8*pr+2*p,2)))
    for p in range(2): A('v_pk_add_f32 %s, %s, %s'%(vr(B+2*p,2),vr(B+2*p,2),vr(B+16+2*p,2)))
    for k in range(4): A('v_min_u32 v%d, -2, v%d'%(B+k,B+k))
    A('buffer_store_dwordx4 %s, v%d, %s, 0 offen sc1'%(vr(B),vZ,srd(sWS)))
    if stamp: A('s_memrealtime s[8:9]')
    A('s_cmp_lg_u32 s3, 0'); A('s_cbranch_scc1 L_fin')
    A('s_cmp_ge_u32 s2, 144'); A('s_cbranch_scc1 L_fin')
    A('s_mov_b32 s%d, 0x40000'%sCnt)
    P=160
    A('L_poll:')
    for i in range(4): A('buffer_load_dwordx4 %s, v%d, %s, %s offen sc1'%(vr(P+4*i),vPoll,srd(sWS),'0' if i==0 else 's%d'%(3+i)))
    A('s_waitcnt vmcnt(0)')
    A('v_max3_u32 v%d, v%d, v%d, v%d'%(u,P,P+1,P+2))
    A('v_max3_u32 v%d, v%d, v%d, v%d'%(w_,P+3,P+4,P+5))
    for i in range(6,14,4):
        A('v_max3_u32 v%d, v%d, v%d, v%d'%(u,u,P+i,P+i+1)); A('v_max3_u32 v%d, v%d, v%d, v%d'%(w_,w_,P+i+2,P+i+3))
    A('v_max3_u32 v%d, v%d, v%d, v%d'%(u,u,P+14,P+15)); A('v_max_u32 v%d, v%d, v%d'%(u,u,w_))
    A('v_cmp_eq_u32 vcc, -1, v%d'%u)
    A('s_cbranch_vccz L_got')
    A('s_sub_u32 s%d, s%d, 1'%(sCnt,sCnt)); A('s_cbranch_scc0 L_poll')
    A('L_got:')
    for p in range(2):
        A('v_pk_add_f32 %s, %s, %s'%(vr(P+2*p,2),vr(P+2*p,2),vr(P+4+2*p,2))); A('v_pk_add_f32 %s, %s, %s'%(vr(P+8+2*p,2),vr(P+8+2*p,2),vr(P+12+2*p,2)))
    for p in range(2): A('v_pk_add_f32 %s, %s, %s'%(vr(P+2*p,2),vr(P+2*p,2),vr(P+8+2*p,2)))
    A('v_permlane32_swap_b32 v%d, v%d'%(P,P+2)); A('v_permlane32_swap_b32 v%d, v%d'%(P+1,P+3))
    A('v_add_f32 v%d, v%d, v%d'%(P,P,P+2)); A('v_add_f32 v%d, v%d, v%d'%(P+1,P+1,P+3))
    A('v_permlane16_swap_b32 v%d, v%d'%(P,P+1))
    A('v_add_f32 v%d, v%d, v%d'%(P,P,P+1))
    for sh in (8,4,2): A('v_add_f32_dpp v%d, v%d, v%d row_ror:%d row_mask:0xf bank_mask:0xf'%(P,P,P,sh))
    A('v_cvt_pk_bf16_f32 v%d, v%d, v%d'%(P,P,P))
    A('buffer_store_short v%d, v%d, %s, 0 offen'%(P,vOut,srd(sOUT)))
    A('L_fin:')
    if stamp:
        A('s_memrealtime s[10:11]')
        A('s_getreg_b32 s12, hwreg(HW_REG_XCC_ID)')
        A('s_waitcnt lgkmcnt(0)')
        A('s_add_u32 s16, s28, 0x10000000'); A('s_addc_u32 s17, s29, 0'); A('s_mov_b32 s18, 0x100000'); A('s_mov_b32 s19, 0x20000')
        A('s_lshl_b32 s13, s2, 2'); A('s_add_u32 s13, s13, s3'); A('s_lshl_b32 s13, s13, 5')
        for i,r in enumerate((96,100,98,12,8,10,sCnt,sCnt)): A('v_mov_b32 v%d, s%d'%(200+i,r))
        A('v_mov_b32 v199, s13')
        A('buffer_store_dwordx4 v[200:203], v199, s[16:19], 0 offen'); A('buffer_store_dwordx4 v[204:207], v199, s[16:19], 0 offen offset:16')
    A('L_end:'); A('s_endpgm')
    body,added=pad(o)
    hdr=open('cdna_kernels/%s.s.ref'%NAME).read().split('; Override launch')[0] if True else ''
    txt=hdr+'; @launch grid=(256,1,1) block=(256,1,1) lds=%d\n'%LDS
    txt+='.amdgcn_target "amdgcn-amd-amdhsa--gfx950"\n.text\n.globl %s\n.p2align 8\n.type %s,@function\n%s:\n'%(KN,KN,KN)
    txt+='\n'.join(('' if l.endswith(':') else '    ')+l for l in body)+'\n'
    txt+='''.section .rodata,"a"
.p2align 6
.amdhsa_kernel %s
  .amdhsa_next_free_vgpr 512
  .amdhsa_next_free_sgpr 102
  .amdhsa_accum_offset 256
  .amdhsa_group_segment_fixed_size 0
  .amdhsa_kernarg_size 104
  .amdhsa_user_sgpr_count 2
  .amdhsa_user_sgpr_kernarg_segment_ptr 1
  .amdhsa_system_sgpr_workgroup_id_x 1
  .amdhsa_float_denorm_mode_32 3
.end_amdhsa_kernel
'''%KN
    return txt,LDS,added,len(body)
if __name__=='__main__':
    out=sys.argv[1]
    kw=eval('dict(%s)'%(sys.argv[2] if len(sys.argv)>2 else ''))
    txt,lds,added,n=gen(**kw)
    open(out,'w').write(txt)
    print('wrote',out,'lines',n,'nop states',added,'lds',lds,file=sys.stderr)
```
